```python
import torch

def _softmax(x, axis=-1):
    return torch.softmax(x, dim=axis)
def _gelu(x):
    return torch.nn.functional.gelu(x, approximate="tanh")
def _silu(x):
    return torch.nn.functional.silu(x)
def _sigmoid(x):
    return torch.sigmoid(x)
def _layernorm(x, axis=-1, eps=1e-5):
    m = x.mean(dim=axis, keepdim=True)
    v = x.var(dim=axis, keepdim=True, unbiased=False)
    return (x - m) / torch.sqrt(v + eps)
def _scatter_add(tgt, idx, src, axis=0):
    return tgt.clone().index_add_(axis, idx, src)
def _segment_sum(src, seg, n):
    out = torch.zeros((n,) + src.shape[1:], dtype=src.dtype)
    return out.index_add_(0, seg, src)
def _pad(x, pw):
    flat = tuple(v for pair in reversed(pw) for v in pair)
    return torch.nn.functional.pad(x, flat)

kernel_name = 'concat_heads__ssm_conv_s4d__compressed_kv_cla__prompt'

def setup_inputs():

    _w = (lambda a: (lambda t: t.to(torch.bfloat16) if t.is_floating_point() else t)(torch.as_tensor(a)))
    def _A_setup():
        Bsz, L, D, N = 1, 2048, 512, 128
        return {
            "u": _w((lambda *s: torch.randn(*s, dtype=torch.bfloat16) * 0.05)(Bsz, L, D)),
            "log_A_real": _w((lambda *s: torch.randn(*s, dtype=torch.bfloat16) * 6.4)(D, N) * 0.5),
            "A_imag": _w((lambda *s: torch.randn(*s, dtype=torch.bfloat16) * 0.05)(D, N) * 3.14),
            "C_real": _w((lambda *s: torch.randn(*s, dtype=torch.bfloat16) * 0.05)(D, N) / N ** 0.5),
            "C_imag": _w((lambda *s: torch.randn(*s, dtype=torch.bfloat16) * 0.05)(D, N) / N ** 0.5),
            "log_dt": _w((lambda *s: torch.randn(*s, dtype=torch.bfloat16) * 0.05)(D) * 0.5 - 4.0),
            "D_skip": _w((lambda *s: torch.randn(*s, dtype=torch.bfloat16) * 0.05)(D)),
        }
    _A_in = _A_setup()

    def _B_setup():
        B, H, Sq, Sk, D, M = 1, 32, 2048, 2048, 128, 512
        Dc = 4 * D
        return {
            "x": _w((lambda *s: torch.randn(*s, dtype=torch.bfloat16) * 0.8)(B, Sq, M)),
            "c_kv": _w((lambda *s: torch.randn(*s, dtype=torch.bfloat16) * 0.2)(B, Sk, Dc)),
            "w_q": _w((lambda *s: torch.randn(*s, dtype=torch.bfloat16) * 3.2)(M, H, D) * (M ** -0.5)),
            "w_uk": _w((lambda *s: torch.randn(*s, dtype=torch.bfloat16) * 3.2)(Dc, H, D) * (Dc ** -0.5)),
            "w_uv": _w((lambda *s: torch.randn(*s, dtype=torch.bfloat16) * 0.2)(Dc, H, D) * (Dc ** -0.5)),
            "w_o": _w((lambda *s: torch.randn(*s, dtype=torch.bfloat16) * 0.2)(H, D, M) * ((H * D) ** -0.5)),
        }
    _B_in = _B_setup()

    return {
        "A_u": _A_in["u"],
        "A_log_A_real": _A_in["log_A_real"],
        "A_A_imag": _A_in["A_imag"],
        "A_C_real": _A_in["C_real"],
        "A_C_imag": _A_in["C_imag"],
        "A_log_dt": _A_in["log_dt"],
        "A_D_skip": _A_in["D_skip"],
        "B_x": _B_in["x"],
        "B_c_kv": _B_in["c_kv"],
        "B_w_q": _B_in["w_q"],
        "B_w_uk": _B_in["w_uk"],
        "B_w_uv": _B_in["w_uv"],
        "B_w_o": _B_in["w_o"],
    }

def reference(A_u, A_log_A_real, A_A_imag, A_C_real, A_C_imag, A_log_dt, A_D_skip, B_x, B_c_kv, B_w_q, B_w_uk, B_w_uv, B_w_o):
    def _A_ref(u, log_A_real, A_imag, C_real, C_imag, log_dt, D_skip):
        L = u.shape[1]
        dt = torch.exp(log_dt)
        A = -torch.exp(log_A_real) + 1j * A_imag
        C = (C_real + 1j * C_imag) * dt[:, None]
        pos = (lambda x, dt: x.to(dt))(torch.arange(L), log_dt.dtype)
        P = torch.exp((A * dt[:, None])[:, :, None] * pos[None, None, :])
        K = 2.0 * torch.einsum("dn,dnl->dl", C, P).real
        L2 = 2 * L
        u_t = (lambda x, *d: x.permute(*d))(u, 0, 2, 1)
        Kf = (lambda x, *a, **k: torch.fft.rfft(x.float(), *a, **k))(K, L2)
        Uf = (lambda x, *a, **k: torch.fft.rfft(x.float(), *a, **k))(u_t, L2)
        y = (lambda x, *a, **k: torch.fft.irfft(x, *a, **k).to(torch.bfloat16))(Uf * Kf[None, :, :], L2)[:, :, :L]
        y = (lambda x, *d: x.permute(*d))(y, 0, 2, 1)
        return y + u * D_skip[None, None, :]

    def _B_ref(x, c_kv, w_q, w_uk, w_uv, w_o):
        B, Sq, M = x.shape[0], x.shape[1], x.shape[2]
        Sk = c_kv.shape[1]
        H, D = w_q.shape[1], w_q.shape[2]
        q = torch.einsum("bqm,mhd->bhqd", x, w_q)
        k = torch.einsum("bkc,chd->bhkd", c_kv, w_uk)
        v = torch.einsum("bkc,chd->bhkd", c_kv, w_uv)
        scores = torch.einsum("bhqd,bhkd->bhqk", q, k) * (D ** -0.5)
        off = Sk - Sq
        qi = torch.arange(Sq)[:, None]
        kj = torch.arange(Sk)[None, :]
        cmask = kj <= (qi + off)
        scores = torch.where(cmask[None, None], scores, -1e9)
        p = _softmax(scores, axis=-1)
        ctx = torch.einsum("bhqk,bhkd->bhqd", p, v)
        return torch.einsum("bhqd,hdm->bqm", ctx, w_o)

    a = _A_ref(A_u, A_log_A_real, A_A_imag, A_C_real, A_C_imag, A_log_dt, A_D_skip)
    b = _B_ref(B_x, B_c_kv, B_w_q, B_w_uk, B_w_uv, B_w_o)
    return torch.concatenate([a, b], axis=-1)
```

```python
import re

TRANS = {"v_exp_f32", "v_log_f32", "v_rcp_f32", "v_rsq_f32", "v_sqrt_f32", "v_sin_f32", "v_cos_f32", "v_rcp_iflag_f32"}
_REG = re.compile(r"^(-|\|)?(abs\()?([vsa])(\d+)\)?\|?$")
_RNG = re.compile(r"^(-)?([vsa])\[(\d+):(\d+)\]$")


def regs_of(tok):
    tok = tok.strip()
    m = _RNG.match(tok)
    if m:
        return [m.group(2) + str(i) for i in range(int(m.group(3)), int(m.group(4)) + 1)]
    m = _REG.match(tok)
    if m:
        return [m.group(3) + m.group(4)]
    if tok == "vcc":
        return ["vcc"]
    if tok in ("vcc_lo", "vcc_hi"):
        return ["vcc"]
    if tok in ("exec", "exec_lo", "exec_hi"):
        return ["exec"]
    if tok == "m0":
        return ["m0"]
    return []


class Ins:
    __slots__ = ("text", "mn", "ops", "mods", "R", "W", "kind", "passes", "label", "target", "A", "B", "C", "ld", "cls", "wide_store", "sdata")

    def __init__(self, text):
        self.text = text
        t = text.split(";")[0].strip()
        self.label = None
        self.target = None
        self.R, self.W = [], []
        self.kind = "other"
        self.passes = 0
        self.A = self.B = self.C = []
        self.ld = []
        self.cls = None
        self.wide_store = False
        self.sdata = []
        self.mn = ""
        self.ops = []
        self.mods = ""
        if not t or t.startswith("."):
            self.kind = "dir"
            return
        if t.endswith(":"):
            self.kind = "label"
            self.label = t[:-1]
            return
        parts = t.split(None, 1)
        mn = self.mn = parts[0]
        rest = parts[1] if len(parts) > 1 else ""
        ops = [o.strip() for o in rest.split(",")] if rest else []
        if ops:
            last = ops[-1].split()
            if len(last) > 1:
                ops[-1] = last[0]
                self.mods = " ".join(last[1:])
        self.ops = ops
        r = lambda i: regs_of(ops[i]) if i < len(ops) else []
        allr = lambda a: [x for i in range(a, len(ops)) for x in r(i)]
        if mn.startswith("v_mfma"):
            self.kind = "mfma"
            self.W = r(0); self.A = r(1); self.B = r(2); self.C = r(3)
            self.R = self.A + self.B + self.C
            if "32x32x16_bf16" in mn: self.passes = 8
            elif "16x16x32_bf16" in mn: self.passes = 4
            elif "32x32x2_f32" in mn: self.passes = 16; self.kind = "sgemm"
            elif "16x16x4_f32" in mn: self.passes = 8; self.kind = "sgemm"
            else: raise ValueError(mn)
        elif mn.startswith("v_"):
            self.kind = "trans" if mn.replace("_e32", "").replace("_e64", "") in TRANS else "valu"
            if mn.startswith("v_permlane"):
                self.W = r(0) + r(1); self.R = r(0) + r(1)
            elif re.match(r"v_(add|sub|subrev|addc|subb|subbrev)_co_", mn):
                self.W = r(0) + r(1); self.R = allr(2)
            elif mn.startswith("v_fmac") or mn.startswith("v_pk_fmac") or mn.startswith("v_writelane"):
                self.W = r(0); self.R = allr(0)
            elif mn == "v_nop":
                pass
            else:
                self.W = r(0); self.R = allr(1)
                if mn.startswith("v_cmpx"):
                    raise ValueError("no cmpx")
        elif mn.startswith("ds_"):
            self.kind = "ds"; self.cls = "lgkm"
            if mn.startswith("ds_read") or "permute" in mn or "swizzle" in mn or "_rtn" in mn:
                self.ld = r(0); self.R = allr(1)
            else:
                self.R = allr(0)
        elif mn.startswith("buffer_") or mn.startswith("global_"):
            self.kind = "vmem"; self.cls = "vm"
            if mn in ("buffer_wbl2", "buffer_inv"):
                pass
            elif "load" in mn:
                if re.search(r"\blds\b", self.mods) or "_lds_" in mn:
                    self.R = allr(0) + ["m0"]
                else:
                    self.ld = r(0); self.R = allr(1)
            elif "atomic" in mn:
                self.R = allr(0)
                if "sc0" in self.mods and mn.startswith("buffer_"):
                    self.ld = r(0)
            else:
                self.R = allr(0)
                self.sdata = r(0) if mn.startswith("buffer_") else r(1)
                self.wide_store = ("x3" in mn or "x4" in mn)
        elif mn.startswith("s_load") or mn.startswith("s_buffer_load") or mn in ("s_memtime", "s_memrealtime"):
            self.kind = "smem"; self.cls = "smem"
            self.ld = r(0); self.R = allr(1)
        elif mn.startswith("s_"):
            self.kind = "salu"
            if mn.startswith("s_cbranch") or mn == "s_branch":
                self.kind = "branch"; self.target = ops[0]
                if "vcc" in mn: self.R = ["vcc"]
            elif mn in ("s_waitcnt", "s_nop", "s_barrier", "s_endpgm", "s_setprio", "s_sleep", "s_sethalt"):
                self.kind = mn
            elif mn.startswith("s_cmp") or mn.startswith("s_bitcmp"):
                self.R = allr(0)
            elif "saveexec" in mn:
                self.W = r(0) + ["exec"]; self.R = allr(1) + ["exec"]
            else:
                self.W = r(0); self.R = allr(1)
        else:
            raise ValueError("unknown instruction " + text)

    def states(self):
        if self.kind in ("dir", "label"):
            return 0
        if self.kind == "s_nop":
            return int(self.ops[0], 0) + 1
        return 1


def _succ(ins, i, labels):
    x = ins[i]
    if x.kind == "s_endpgm":
        return []
    if x.kind == "branch":
        t = labels[x.target]
        return [t] if x.mn == "s_branch" else [t, i + 1]
    return [i + 1] if i + 1 < len(ins) else []


def _flow(ins, transfer, merge, init):
    labels = {x.label: i for i, x in enumerate(ins) if x.kind == "label"}
    state = {0: init}
    work = [0]
    while work:
        i = work.pop()
        out = transfer(i, state[i])
        for s in _succ(ins, i, labels):
            if s not in state:
                state[s] = out; work.append(s)
            else:
                m = merge(state[s], out)
                if m != state[s]:
                    state[s] = m; work.append(s)
    return state


def _parse_wait(x):
    t = x.text.split(";")[0]
    vm = re.search(r"vmcnt\((\d+)\)", t); lg = re.search(r"lgkmcnt\((\d+)\)", t)
    return (int(vm.group(1)) if vm else None, int(lg.group(1)) if lg else None)


def _need_wait(x, st):
    vm = lg = None
    for r in x.R + x.W + x.ld:
        e = st.get(r)
        if e is None: continue
        c, age = e
        if c == "vm": vm = age if vm is None else min(vm, age)
        elif c == "lgkm": lg = age if lg is None else min(lg, age)
        else: lg = 0
    return vm, lg


def _apply_wait(st, vm, lg):
    out = {}
    smem_pending = any(c == "smem" for c, _ in st.values())
    for r, (c, age) in st.items():
        if c == "vm" and vm is not None and age >= vm: continue
        if c == "lgkm" and lg is not None and age >= lg and (lg == 0 or not smem_pending): continue
        if c == "smem" and lg == 0: continue
        out[r] = (c, age)
    return out


def insert_waits(ins):
    def transfer(i, st):
        x = ins[i]
        if x.kind == "s_waitcnt":
            vm, lg = _parse_wait(x)
            return _apply_wait(st, vm, lg)
        vm, lg = _need_wait(x, st)
        if vm is not None or lg is not None:
            if lg is not None and any(c == "smem" for c, _ in st.values()): lg = 0
            st = _apply_wait(st, vm, lg)
        if x.cls:
            c = x.cls
            cc = "lgkm" if c == "smem" else c
            st = {r: ((k, min(a + 1, 63)) if (k == cc) else (k, a)) for r, (k, a) in st.items()}
            for r in x.ld: st[r] = (c, 0)
        return st

    def merge(a, b):
        out = dict(a)
        for r, (c, age) in b.items():
            if r in out:
                c0, a0 = out[r]
                if c0 != c:
                    out[r] = ("smem", 0) if "vm" not in (c0, c) else (c0, 0)
                    if c0 != c and "vm" in (c0, c):
                        raise ValueError("register %s pending on two counters at a join" % r)
                else:
                    out[r] = (c, min(a0, age))
            else:
                out[r] = (c, age)
        return out

    state = _flow(ins, transfer, merge, {})
    out = []
    for i, x in enumerate(ins):
        st = state.get(i)
        if st is not None and x.kind not in ("s_waitcnt", "dir", "label"):
            vm, lg = _need_wait(x, st)
            if vm is not None or lg is not None:
                if lg is not None and any(c == "smem" for c, _ in st.values()): lg = 0
                w = "    s_waitcnt"
                if vm is not None: w += " vmcnt(%d)" % min(vm, 63)
                if lg is not None: w += " lgkmcnt(%d)" % min(lg, 15)
                out.append(Ins(w))
        out.append(x)
    return out


HZMAX = 24


def _required(x, ev):
    need = 0

    def chk(key, n):
        nonlocal need
        a = ev.get(key)
        if a is not None and a < n:
            need = max(need, n - a)
    isv = x.kind in ("valu", "trans")
    ism = x.kind in ("mfma", "sgemm")
    mem = x.kind in ("ds", "vmem")
    for (tag, reg, ex), a in list(ev.items()):
        if tag == "vw":
            if ism and reg in x.R: chk((tag, reg, ex), 2)
            if isv and reg in x.R:
                if reg[0] == "s" or reg == "vcc":
                    n = 2
                    if x.mn.startswith("v_readlane") or x.mn.startswith("v_writelane"): n = 4
                    chk((tag, reg, ex), n)
                else:
                    if x.mn.startswith("v_readlane") or x.mn.startswith("v_readfirstlane"): chk((tag, reg, ex), 1)
                    if x.mn.startswith("v_permlane") or "dpp" in x.mods or "row_" in x.mods or "quad_perm" in x.mods: chk((tag, reg, ex), 2)
                    if ex == "trans" and x.kind != "trans": chk((tag, reg, ex), 1)
                    if ex == "opsel": chk((tag, reg, ex), 1)
            if x.kind == "vmem" and reg[0] == "s" and reg in x.R: chk((tag, reg, ex), 5)
            if x.kind in ("salu", "branch") and (reg[0] == "s" or reg == "vcc") and reg in x.R: chk((tag, reg, ex), 1)
        elif tag == "md":
            kind, p, first, n = ex
            if ism:
                if reg in x.A or reg in x.B:
                    chk((tag, reg, ex), (p + 4 if kind == "mfma" else p + 2))
                if reg in x.C:
                    same = (x.C[0] == first and len(x.C) == n and x.passes == p and x.kind == kind)
                    if not same:
                        chk((tag, reg, ex), (p + 2 if kind == "mfma" else p))
                elif reg in x.W:
                    chk((tag, reg, ex), (p + 2 if kind == "mfma" else p))
            elif (isv and (reg in x.R or reg in x.W)) or (mem and (reg in x.R or reg in x.ld)):
                chk((tag, reg, ex), (p + 4 if kind == "mfma" else p + 2))
        elif tag == "mc":
            if (isv and reg in x.W) or (mem and reg in x.ld): chk((tag, reg, ex), ex - 1)
        elif tag == "m0":
            if x.kind == "vmem" and "m0" in x.R: chk((tag, reg, ex), 1)
        elif tag == "sd":
            if isv and reg in x.W: chk((tag, reg, ex), 2)
            elif reg in x.W or reg in x.ld: chk((tag, reg, ex), 1)
        elif tag == "vexec":
            pass
    return need


def _events(x):
    ev = {}
    if x.kind in ("valu", "trans"):
        ex = "trans" if x.kind == "trans" else ("opsel" if ("op_sel" in x.mods or "sdwa" in x.mn or "dst_sel" in x.mods) else None)
        for r in x.W: ev[("vw", r, ex)] = 0
    elif x.kind in ("mfma", "sgemm"):
        for r in x.W: ev[("md", r, (x.kind, x.passes, x.W[0], len(x.W)))] = 0
        if x.kind == "mfma":
            for r in x.C: ev[("mc", r, x.passes)] = 0
    elif x.kind == "salu" and "m0" in x.W:
        ev[("m0", "m0", None)] = 0
    elif x.kind == "vmem" and x.wide_store:
        for r in x.sdata: ev[("sd", r, None)] = 0
    return ev


def insert_nops(ins):
    total = 0
    while True:
        def transfer(i, st):
            x = ins[i]
            n = x.states()
            if n == 0: return st
            n += _required(x, st)
            out = {k: a + n for k, a in st.items() if a + n < HZMAX}
            wr = set(x.W)
            if wr:
                out = {k: a for k, a in out.items() if not (k[0] == "vw" and k[1] in wr)}
            out.update(_events(x))
            return out

        def merge(a, b):
            out = dict(a)
            for k, v in b.items():
                out[k] = min(out.get(k, 99), v)
            return out
        state = _flow(ins, transfer, merge, {})
        out = []
        added = 0
        for i, x in enumerate(ins):
            st = state.get(i)
            if st is not None and x.states():
                n = _required(x, st)
                while n > 0:
                    k = min(n, 16)
                    out.append(Ins("    s_nop %d" % (k - 1)))
                    n -= k; added += 1
            out.append(x)
        ins = out
        total += added
        if not added:
            return ins, total


class Kernel:
    def __init__(self, name, vgpr=256, sgpr=102):
        self.name = name; self.lines = []; self.vgpr = vgpr; self.sgpr = sgpr
        self._lab = 0

    def __call__(self, s):
        for l in s.split("\n"):
            l = l.strip()
            if l: self.lines.append("    " + l if not l.endswith(":") else l)

    prof = False
    nstamp = 0
    def stamp(self):
        if not self.prof: return
        i = self.nstamp; self.nstamp += 1
        assert i < 28
        self(f"s_memtime s[98:99]\ns_waitcnt lgkmcnt(0)\ns_mov_b32 s{70 + i}, s98")

    def stamp_dump(self, sO, swave, off):
        if not self.prof: return
        self(f"s_lshl_b32 s98, s2, 3\ns_add_u32 s98, s98, s{swave}\ns_lshl_b32 s98, s98, 7\ns_add_u32 s98, s98, {off}")
        self("v_mov_b32 v1, s98")
        for i in range(self.nstamp):
            self(f"v_mov_b32 v2, s{70 + i}\nbuffer_store_dword v2, v1, s[{sO}:{sO+3}], 0 offen offset:{4 * i}\ns_nop 1")

    def label(self, base="L"):
        self._lab += 1
        return "%s_%s_%d" % (self.name[:12], base, self._lab)

    def finish(self):
        ins = [Ins(l) for l in self.lines]
        ins = insert_waits(ins)
        ins, n = insert_nops(ins)
        self.nops = n
        head = ".globl %s\n.p2align 8\n.type %s,@function\n%s:\n" % (self.name, self.name, self.name)
        return head + "\n".join(x.text for x in ins) + "\n"

    def descriptor(self):
        acc = (self.vgpr + 3) // 4 * 4
        return """.p2align 6
.amdhsa_kernel %s
  .amdhsa_next_free_vgpr %d
  .amdhsa_next_free_sgpr %d
  .amdhsa_accum_offset %d
  .amdhsa_group_segment_fixed_size 0
  .amdhsa_kernarg_size 128
  .amdhsa_user_sgpr_count 2
  .amdhsa_user_sgpr_kernarg_segment_ptr 1
  .amdhsa_system_sgpr_workgroup_id_x 1
  .amdhsa_float_denorm_mode_32 3
  .amdhsa_float_denorm_mode_16_64 3
.end_amdhsa_kernel
""" % (self.name, self.vgpr, self.sgpr, acc)


def interleave(mf, fillers, start=0):
    out = []
    by = {}
    for s, l in fillers: by.setdefault(s, []).append(l)
    for l in by.get(-1, []): out.append(l)
    for i, m in enumerate(mf):
        out.append(m)
        for l in by.get(i, []): out.append(l)
    for s in sorted(k for k in by if k >= len(mf)):
        out += by[s]
    return out
```

```python
from asmlib import *
import struct, os

WS_K = 0
WS_V = 16 << 20
WS_C = 48 << 20
WS_BYTES = 256 << 20
QSCALE = 1.4426950408889634 / (128.0 ** 0.5)
MF = "v_mfma_f32_16x16x32_bf16"


def f32bits(x):
    return struct.unpack("<I", struct.pack("<f", x))[0]


def load_ptrs(k, lst):
    for s, off in lst:
        k(f"s_load_dwordx2 s[{s}:{s+1}], s[0:1], {off}")
    k("s_waitcnt lgkmcnt(0)")


def srd(k, d, p, nbytes):
    k(f"s_mov_b32 s{d}, s{p}\ns_and_b32 s{d+1}, s{p+1}, 0xffff\ns_mov_b32 s{d+2}, {nbytes}\ns_mov_b32 s{d+3}, 0x00020000")


def r4(b): return f"v[{b}:{b+3}]"
def r2(b): return f"v[{b}:{b+1}]"
```

```python
from common import *

STG = 49152
gRA = 4
gWA = 12
gRr = 14
gWr = 16
gOut = 20
gT = 21
gF = 32
gAcc = 96
gPk = 160
sgM0R, sgM0W, sgT = 40, 41, 42


def gemm_setup_lane(k, vLANE, sW, sHead):
    t = gT
    k(f"""
    v_lshrrev_b32 v{t}, 3, v{vLANE}
    v_and_b32 v{t+1}, 7, v{vLANE}
    v_lshrrev_b32 v{t+2}, 4, v{vLANE}
    """)
    k(f"""
    s_and_b32 s{sgT}, s{sW}, 3
    s_lshl_b32 s{sgT}, s{sgT}, 4
    s_lshr_b32 s{sgT+1}, s{sW}, 2
    s_lshl_b32 s{sgT+1}, s{sgT+1}, 7
    s_lshl_b32 s44, s{sHead}, 8
    s_add_u32 s{sgT+1}, s{sgT+1}, s44
    v_and_b32 v{t+3}, 1, v{t+2}
    """)
    for j in range(2):
        k(f"""
        v_or_b32 v{t+4}, {2 * j}, v{t+3}
        v_lshlrev_b32 v{t+4}, 1, v{t+4}
        v_xor_b32 v{t+4}, v{t+4}, v{t+1}
        v_lshlrev_b32 v{t+4}, 4, v{t+4}
        v_add_u32 v{t+4}, s{sgT+1}, v{t+4}
        v_add_u32 v{t+5}, {8 * j}, v{t}
        v_add_u32 v{t+5}, s{sgT}, v{t+5}
        v_lshlrev_b32 v{t+5}, 13, v{t+5}
        v_add_u32 v{t+4}, v{t+4}, v{t+5}
        v_subrev_u32 v{gWA + j}, {1024 * j}, v{t+4}
        """)
    k(f"""
    s_lshl_b32 s{sgM0R}, s{sW}, 12
    s_lshl_b32 s{sgM0W}, s{sW}, 11
    s_add_u32 s{sgM0W}, s{sgM0W}, 32768
    """)
    k(f"""
    v_and_b32 v{t+3}, 15, v{vLANE}
    v_lshrrev_b32 v{t+4}, 1, v{t+3}
    v_xor_b32 v{t+4}, v{t+4}, v{t+2}
    v_lshlrev_b32 v{t+3}, 7, v{t+3}
    s_lshr_b32 s{sgT}, s{sW}, 1
    s_lshl_b32 s{sgT}, s{sgT}, 13
    v_add_u32 v{t+3}, s{sgT}, v{t+3}
    """)
    for ks in range(2):
        k(f"v_xor_b32 v{t+5}, {4 * ks}, v{t+4}\nv_lshlrev_b32 v{t+5}, 4, v{t+5}\nv_add_u32 v{gRr + ks}, v{t+3}, v{t+5}")
    k(f"""
    v_and_b32 v{t+3}, 15, v{vLANE}
    v_lshrrev_b32 v{t+4}, 2, v{t+3}
    v_and_b32 v{t+3}, 3, v{t+3}
    v_lshlrev_b32 v{t+3}, 3, v{t+3}
    v_lshlrev_b32 v{t+5}, 7, v{t+4}
    v_add_u32 v{t+3}, v{t+3}, v{t+5}
    v_lshlrev_b32 v{t+5}, 10, v{t+2}
    v_add_u32 v{t+3}, v{t+3}, v{t+5}
    v_lshrrev_b32 v{t+4}, 1, v{t+4}
    v_and_b32 v{t+5}, 1, v{t+2}
    v_lshlrev_b32 v{t+5}, 1, v{t+5}
    v_or_b32 v{t+4}, v{t+4}, v{t+5}
    s_and_b32 s{sgT}, s{sW}, 1
    s_lshl_b32 s{sgT}, s{sgT}, 13
    s_add_u32 s{sgT}, s{sgT}, 32768
    v_add_u32 v{t+3}, s{sgT}, v{t+3}
    """)
    for ct in range(4):
        k(f"v_xor_b32 v{t+5}, {ct}, v{t+4}\nv_lshlrev_b32 v{t+5}, 5, v{t+5}\nv_add_u32 v{gWr + ct}, v{t+3}, v{t+5}")


def gemm_setup_rows(k, setidx, srow):
    t = gT
    for j in range(4):
        k(f"""
        v_add_u32 v{t+3}, {4 * (j & 1)}, v{t+2}
        v_and_b32 v{t+3}, 7, v{t+3}
        v_xor_b32 v{t+3}, v{t+3}, v{t+1}
        v_lshlrev_b32 v{t+3}, 4, v{t+3}
        v_add_u32 v{t+4}, {8 * j}, v{t}
        v_add_u32 v{t+4}, s{srow}, v{t+4}
        v_lshlrev_b32 v{t+4}, 10, v{t+4}
        v_add_u32 v{t+3}, v{t+3}, v{t+4}
        v_subrev_u32 v{gRA + 4 * setidx + j}, {1024 * j}, v{t+3}
        """)


class Sub:
    def __init__(self, sR, sWt, raset, swap, finish):
        self.sR, self.sW, self.raset, self.swap, self.finish = sR, sWt, raset, swap, finish


def gemm_chain(k, subs, after_last_barrier=None, pre=None):
    NS = 8 * len(subs)

    def dma(S):
        sub, st, b = subs[S // 8], S % 8, S % 3
        L = [f"s_add_u32 m0, s{sgM0R}, {b * STG}\ns_movk_i32 s{sgT}, {st * 128}"]
        for j in range(4):
            L.append(f"buffer_load_dwordx4 v{gRA + 4 * sub.raset + j}, s[{sub.sR}:{sub.sR+3}], s{sgT} offen offset:{1024 * j} lds")
        L.append(f"s_add_u32 m0, s{sgM0W}, {b * STG}\ns_mov_b32 s{sgT+1}, {st * 64 * 8192}")
        for j in range(2):
            L.append(f"buffer_load_dwordx4 v{gWA + j}, s[{sub.sW}:{sub.sW+3}], s{sgT+1} offen offset:{1024 * j} lds")
        return L

    def frag(fs, i): return gF + (fs * 8 + i) * 4

    def reads(S, ks):
        L = []
        for i in range(4):
            f = frag(ks, 4 + i)
            for t in range(2):
                L.append(f"ds_read_b64_tr_b16 {r2(f + 2*t)}, v{gWr + i} offset:{ks * 4096 + t * 512}")
            f = frag(ks, i)
            L.append(f"ds_read_b128 {r4(f)}, v{gRr + ks} offset:{i * 2048}")
        return L

    def rot(S):
        d = STG if (S % 3) < 2 else -2 * STG
        op = f"v_add_u32 v%d, {d}, v%d" if d > 0 else f"v_subrev_u32 v%d, {-d}, v%d"
        return [op % (r, r) for r in list(range(gRr, gRr + 2)) + list(range(gWr, gWr + 4))]

    def mfmas(S, ks):
        sub = subs[S // 8]
        first = (S % 8 == 0 and ks == 0)
        L = []
        for rt in range(4):
            for ct in range(4):
                a = gAcc + (rt * 4 + ct) * 4
                fr, fc = frag(ks, rt), frag(ks, 4 + ct)
                A, B = (fc, fr) if sub.swap else (fr, fc)
                L.append(f"{MF} {r4(a)}, {r4(A)}, {r4(B)}, {'0' if first else r4(a)}")
        return L

    for S in range(3):
        for l in dma(S): k(l)
    if pre: pre()
    k("s_waitcnt vmcnt(12)\ns_barrier")
    for l in reads(0, 0): k(l)
    trickle = []
    young = [6]
    after = 6
    for S in range(NS):
        rd = reads(S, 1)
        fl = [(i * 16 // len(rd), l) for i, l in enumerate(rd)]
        for l in interleave(mfmas(S, 0), fl): k(l)
        fl = []
        k("s_waitcnt lgkmcnt(0)")
        if S < NS - 1:
            fl.append((0, f"s_waitcnt vmcnt({after})\ns_barrier"))
            for l in rot(S): fl.append((0, l))
            rd = reads(S + 1, 0)
            for i, l in enumerate(rd): fl.append((1 + i * 13 // len(rd), l))
            n_new = 0
            if S + 3 < NS:
                d = dma(S + 3)
                for i, l in enumerate(d): fl.append((2 + i * 12 // len(d), l))
                n_new = 6
            n_st = 0
            if trickle:
                fl.append((15, trickle.pop(0))); n_st = 1
            after = getattr(gemm_chain, "_prev_st", 0) + n_new + n_st
            gemm_chain._prev_st = n_st
        else:
            while trickle: fl.append((15, trickle.pop(0)))
            if after_last_barrier:
                fl.append((0, "s_barrier"))
                d = after_last_barrier()
                for i, l in enumerate(d): fl.append((1 + i * 14 // len(d), l))
        for l in interleave(mfmas(S, 1), fl): k(l)
        if S % 8 == 7:
            assert not trickle
            trickle = subs[S // 8].finish(k)
    gemm_chain._prev_st = 0
    return trickle


def pack_rowfrag(k, dst, scale=None):
    for rt in range(4):
        for s in range(2):
            for hf in range(2):
                a = gAcc + (rt * 4 + 2 * s + hf) * 4
                if scale is not None:
                    for r in range(4): k(f"v_mul_f32 v{a + r}, s{scale}, v{a + r}")
                d = dst + (rt * 2 + s) * 4 + 2 * hf
                k(f"v_cvt_pk_bf16_f32 v{d}, v{a}, v{a+1}\nv_cvt_pk_bf16_f32 v{d+1}, v{a+2}, v{a+3}")


def pack_colfrag(k, dst):
    for u in range(2):
        for ct in range(4):
            for hf in range(2):
                a = gAcc + ((2 * u + hf) * 4 + ct) * 4
                d = dst + (u * 4 + ct) * 4 + 2 * hf
                k(f"v_cvt_pk_bf16_f32 v{d}, v{a}, v{a+1}\nv_cvt_pk_bf16_f32 v{d+1}, v{a+2}, v{a+3}")
```

```python
from gemm import *
from k_kv import wg_decode

vLANE, vDMA, vLK, vLV, vTHR = 2, 3, 4, 5, 6
vL, vBS = 8, 10
vT0, vT1, vT2, vT3 = 12, 13, 14, 15
vT = 16
vPS = 24
vNM = 28
vQ = 40
vS = 72
vP = 104
vF = 120
vO = 152
vX = 216
D = 6
sW, sH, sPp, sG, sRr, sNL, sN, sCNT, sSK, sSV, sKD, sVD, sKB, sTA, sTB, sTHR, sQB, sKG = 20, 21, 22, 23, 24, 25, 26, 27, 28, 29, 30, 31, 32, 33, 34, 36, 37, 38
sO = 8
NEG_INF = 0xff800000
LQ_L, LQ_S = 0x18000, 0x20000


def S(par, kt=0, qt=0): return vS + 16 * par + (kt * 2 + qt) * 4
def P(par, qt=0): return vP + 8 * par + 4 * qt
def O(ct, qt): return vO + (ct * 2 + qt) * 4


def qk_slots(par, b, self_init):
    sl = []
    for kt in range(2):
        for s in range(4):
            def mk(f, kt=kt, s=s):
                L = []
                for qt in range(2):
                    d = S(par, kt, qt)
                    c = r4(d) if (s or self_init) else r4(vNM + 4 * qt)
                    L.append(f"{MF} {r4(d)}, {r4(f)}, {r4(vQ + (qt * 4 + s) * 4)}, {c}")
                return L
            sl.append((f"v{vLK}", b * 8192 + kt * 4096 + s * 1024, mk))
    return sl


def pv_slots(par, b):
    sl = []
    for ct in range(8):
        def mk(f, ct=ct):
            return [f"{MF} {r4(O(ct, qt))}, {r4(f)}, {r4(P(par, qt))}, {r4(O(ct, qt))}" for qt in range(2)]
        sl.append((f"v{vLV}", b * 8192 + ct * 1024, mk))
    return sl


def exp_ops(par, npos=32):
    L = []
    pos = lambda g: min(g * npos // 32, npos + 1)
    j = 0
    for kt in range(2):
        for hf in range(2):
            for qt in range(2):
                s = S(par, kt, qt) + 2 * hf
                a, b = vT + (2 * j) % 8, vT + (2 * j + 1) % 8
                first = (kt == 0 and hf == 0)
                ps = vBS + qt if first else vPS + (j & 1)
                L.append((pos(4 * j), f"v_exp_f32 v{a}, v{s}"))
                L.append((pos(4 * j + 2), f"v_exp_f32 v{b}, v{s + 1}"))
                L.append((pos(4 * j + 5), f"v_add_f32 v{ps}, v{a}, v{b}"))
                L.append((pos(4 * j + 5), f"v_cvt_pk_bf16_f32 v{P(par, qt) + kt * 2 + hf}, v{a}, v{b}"))
                if not first: L.append((pos(4 * j + 7), f"v_add_f32 v{vBS + qt}, v{vBS + qt}, v{ps}"))
                j += 1
    L.sort(key=lambda t: t[0])
    return L


def mask_init(k, par, skb, zero=False):
    k(f"s_sub_u32 s{sTA}, s{sQB}, s{skb}\ns_lshl_b32 s{sTA}, s{sTA}, 5\nv_add_u32 v{vT0}, s{sTA}, v{vTHR}\nv_mov_b32 v{vT1}, {NEG_INF}")
    for kt in range(2):
        items = [(qt, r) for qt in range(2) for r in range(4)]
        for i, (qt, r) in enumerate(items):
            k(f"v_cmp_gt_i32 s[{44 + 2*i}:{45 + 2*i}], {16 * kt + r - 16 * qt}, v{vT0}")
        for i, (qt, r) in enumerate(items):
            src = "0" if zero else f"v{vNM + 4 * qt}"
            k(f"v_cndmask_b32 v{S(par, kt, qt) + r}, {src}, v{vT1}, s[{44 + 2*i}:{45 + 2*i}]")


def xreduce(k, op, regs):
    for perm in ("v_permlane16_swap_b32", "v_permlane32_swap_b32"):
        for i, r in enumerate(regs): k(f"v_mov_b32 v{vT2 + i}, v{r}")
        for i, r in enumerate(regs): k(f"{perm} v{r}, v{vT2 + i}")
        for i, r in enumerate(regs): k(f"{op} v{r}, v{r}, v{vT2 + i}")


def rowmax(k, par):
    for qt in range(2):
        a, b, d = S(par, 0, qt), S(par, 1, qt), vT0 + qt
        k(f"v_max3_f32 v{d}, v{a}, v{a+1}, v{a+2}\nv_max3_f32 v{d}, v{d}, v{a+3}, v{b}\nv_max3_f32 v{d}, v{d}, v{b+1}, v{b+2}\nv_max_f32 v{d}, v{d}, v{b+3}")
    xreduce(k, "v_max_f32", [vT0, vT1])


def dma_ops():
    L = []
    for sctr, sdst, base in ((sSK, sKD, WS_K), (sSV, sVD, WS_V)):
        L.append(f"s_cmp_lt_u32 s{sctr}, s{sNL}\ns_cselect_b32 s{sTA}, 0, s{sNL}\ns_sub_u32 s{sTA}, s{sctr}, s{sTA}\ns_lshl_b32 s{sTA}, s{sTA}, 15\ns_add_u32 s{sTA}, s{sTA}, s{sKB}"
                 + (f"\ns_add_u32 s{sTA}, s{sTA}, {base}" if base else "") + f"\ns_mov_b32 m0, s{sdst}\ns_add_u32 s{sctr}, s{sctr}, 1\ns_xor_b32 s{sdst}, s{sdst}, 32768")
        for j in range(4):
            L.append(f"buffer_load_dwordx4 v{vDMA}, s[{sO}:{sO+3}], s{sTA} offen offset:{1024*j} lds")
    return L


class Attn:
    def __init__(self, k):
        self.k = k
        self.rare = []

    def region(self, slots, fill, nxt, barrier, first_reads=False):
        k = self.k
        n = len(slots)
        fl = list(fill)
        rd = lambda i, sl: f"ds_read_b128 {r4(vF + 4*(i%8))}, {sl[0]} offset:{sl[1]}"
        if first_reads:
            for i in range(min(D, n)): k(rd(i, slots[i]))
        for i in range(D, n): fl.append((2 * (i - D) + 1, rd(i, slots[i])))
        bpos = n - D + 1
        if barrier:
            fl.append((2 * bpos + 1, "s_waitcnt vmcnt(0) lgkmcnt(0)\ns_barrier\n"
                       f"v_xor_b32 v{vLK}, 0x8000, v{vLK}\nv_xor_b32 v{vLV}, 0x8000, v{vLV}"))
        if nxt is not None:
            for i in range(D):
                pos = max(n - D + i, bpos) if barrier else n - D + i
                fl.append((2 * pos + 1, rd(n + i, nxt[i])))
        if barrier:
            d = dma_ops()
            for i, l in enumerate(d[:5]): fl.append((min(2 * bpos + 2 + i, 2 * n - 1), l))
        mf = []
        for i, sl in enumerate(slots): mf += sl[2](vF + 4 * (i % 8))
        for l in interleave(mf, fl): k(l)

    def check(self, par_e, has_next):
        k = self.k
        lr, lb = k.label("rare"), k.label("back")
        k(f"v_max_f32 v{vT0}, v{vBS}, v{vBS+1}\nv_cmp_lt_f32 vcc, s{sTHR}, v{vT0}\ns_cbranch_vccnz {lr}")
        k(f"{lb}:")
        k(f"v_add_f32 v{vL}, v{vL}, v{vBS}\nv_add_f32 v{vL+1}, v{vL+1}, v{vBS+1}")
        self.rare.append((lr, lb, par_e, has_next))

    def emit_rare(self):
        k = self.k
        for lr, lb, pe, has_next in self.rare:
            k(f"{lr}:")
            rowmax(k, pe)
            for qt in range(2):
                dl, f = vT0 + qt, vT2 + qt
                k(f"v_max_f32 v{dl}, 0, v{dl}\nv_sub_f32 v{f}, 0, v{dl}\nv_exp_f32 v{f}, v{f}")
                for par in ([pe, pe ^ 1] if has_next else [pe]):
                    for kt in range(2):
                        for r in range(4): k(f"v_sub_f32 v{S(par, kt, qt) + r}, v{S(par, kt, qt) + r}, v{dl}")
                for r in range(4): k(f"v_sub_f32 v{vNM + 4*qt + r}, v{vNM + 4*qt + r}, v{dl}")
                k(f"v_mul_f32 v{vL + qt}, v{vL + qt}, v{f}")
                for ct in range(8):
                    for r in range(4): k(f"v_mul_f32 v{O(ct, qt) + r}, v{O(ct, qt) + r}, v{f}")
            for _, l in exp_ops(pe): k(l)
            k(f"s_branch {lb}")
        self.rare = []


def attn_scalars(k):
    k(f"""
    s_lshr_b32 s{sG}, s{sW}, 2
    s_and_b32 s{sRr}, s{sW}, 3
    s_sub_u32 s3, 3, s{sRr}
    s_cmp_eq_u32 s{sG}, 0
    s_cselect_b32 s{sRr}, s{sRr}, s3
    s_sub_u32 s{sNL}, 16, s{sPp}
    s_lshl_b32 s{sKB}, s{sH}, 19
    s_mov_b32 s{sTHR}, 0x44800000
    s_lshl_b32 s{sKD}, s{sW}, 12
    s_add_u32 s{sVD}, s{sKD}, 0x10000
    s_mov_b32 s{sSK}, 0
    s_mov_b32 s{sSV}, 0
    v_lshlrev_b32 v{vDMA}, 4, v{vLANE}
    s_lshl_b32 s3, s{sW}, 12
    v_add_u32 v{vDMA}, s3, v{vDMA}
    """)


def q_sub(k, sX, sWq, raset):
    k(f"""
    s_sub_u32 s46, 15, s{sPp}
    s_cmp_ge_u32 s{sW}, 4
    s_cselect_b32 s46, s{sPp}, s46
    s_lshl_b32 s46, s46, 7
    s_and_b32 s47, s{sW}, 3
    s_lshl_b32 s47, s47, 5
    s_add_u32 s46, s46, s47
    s_mov_b32 s53, {f32bits(QSCALE)}
    """)
    gemm_setup_rows(k, raset, 46)

    def fin(k):
        pack_rowfrag(k, gPk, scale=53)
        k(f"""
        s_lshr_b32 s46, s{sW}, 1
        s_lshl_b32 s46, s46, 14
        s_and_b32 s47, s{sW}, 1
        s_lshl_b32 s47, s47, 11
        s_add_u32 s46, s46, s47
        s_add_u32 s46, s46, {LQ_L}
        v_lshlrev_b32 v{gOut}, 4, v{vLANE}
        v_add_u32 v{gOut}, s46, v{gOut}
        """)
        for rt in range(4):
            for s in range(2):
                k(f"ds_write_b128 v{gOut}, {r4(gPk + (rt*2+s)*4)} offset:{rt * 4096 + s * 1024}")
        return []
    return Sub(sX, sWq, raset, True, fin)


def first_dma():
    d = dma_ops()
    return d[:5] + d[5:] + d[:5]


def q_read(k, area):
    k(f"s_lshl_b32 s{sTB}, s{sRr}, 13\ns_add_u32 s{sTB}, s{sTB}, {area}\nv_lshlrev_b32 v1, 4, v{vLANE}\nv_add_u32 v1, s{sTB}, v1")
    for i in range(8):
        k(f"ds_read_b128 {r4(vQ + 4*i)}, v1 offset:{1024*i}")


def attn_body(k, A, store_mods="", after_store=None):
    k(f"""
    v_lshlrev_b32 v{vLK}, 4, v{vLANE}
    s_lshl_b32 s3, s{sG}, 14
    v_add_u32 v{vLK}, s3, v{vLK}
    v_add_u32 v{vLV}, 0x18000, v{vLK}
    v_and_b32 v{vTHR}, 15, v{vLANE}
    v_lshrrev_b32 v1, 4, v{vLANE}
    v_lshlrev_b32 v1, 2, v1
    v_sub_u32 v{vTHR}, v{vTHR}, v1
    s_waitcnt vmcnt(8) lgkmcnt(0)
    s_barrier
    """)
    q_read(k, LQ_L)
    for ps in range(2):
        if ps == 0:
            k(f"s_mov_b32 s{sN}, s{sNL}\ns_sub_u32 s39, 15, s{sPp}")
        else:
            k(f"s_add_u32 s{sN}, s{sPp}, 1\ns_mov_b32 s39, s{sPp}")
        k(f"s_lshl_b32 s{sQB}, s39, 2\ns_add_u32 s{sQB}, s{sQB}, s{sRr}\ns_lshl_b32 s{sKG}, s{sG}, 1")
        k.stamp()
        mask_init(k, 0, sKG, zero=True)
        sl0 = qk_slots(0, 0, True); sl1 = qk_slots(1, 1, True)
        zero_o = [(i // 4, f"v_mov_b32 v{vO + i}, 0") for i in range(64)]
        A.region(sl0, zero_o, sl1, False, first_reads=True)
        rowmax(k, 0)
        for qt in range(2):
            k(f"v_max_f32 v{vT0 + qt}, 0xf149f2ca, v{vT0 + qt}")
            for r in range(4): k(f"v_sub_f32 v{vNM + 4*qt + r}, 0, v{vT0 + qt}")
            for kt in range(2):
                for r in range(4): k(f"v_sub_f32 v{S(0, kt, qt) + r}, v{S(0, kt, qt) + r}, v{vT0 + qt}")
        k(f"s_add_u32 s{sKG}, s{sKG}, 1")
        mask_init(k, 1, sKG)
        k(f"s_add_u32 s{sKG}, s{sKG}, 3")
        lmain, llast, lpen, l1 = k.label("main"), k.label("last"), k.label("pen"), k.label("n1")
        main_first = qk_slots(0, 0, False)
        last_first = pv_slots(0, 0)
        setl = f"v_mov_b32 v{vL}, v{vBS}\nv_mov_b32 v{vL+1}, v{vBS+1}"
        if ps == 1:
            k(f"s_cmp_eq_u32 s{sN}, 1\ns_cbranch_scc1 {l1}")
        A.region(sl1, exp_ops(0, 16), main_first, True)
        k(setl)
        k(f"s_sub_u32 s{sCNT}, s{sN}, 2")
        d = dma_ops()
        k.stamp()
        k(f"s_cmp_eq_u32 s{sCNT}, 0\ns_cbranch_scc1 {lpen}")
        k(f".p2align 6\n{lmain}:")
        vd = [(2 + 4 * i, l) for i, l in enumerate(d[5:])]
        A.region(qk_slots(0, 0, False) + pv_slots(0, 0), exp_ops(1) + vd, qk_slots(1, 1, False), False)
        A.check(1, True)
        A.region(qk_slots(1, 1, False) + pv_slots(1, 1), exp_ops(0), main_first, True)
        A.check(0, True)
        k(f"s_add_u32 s{sKG}, s{sKG}, 4\ns_sub_u32 s{sCNT}, s{sCNT}, 1\ns_cmp_lg_u32 s{sCNT}, 0\ns_cbranch_scc1 {lmain}")
        k(f"{lpen}:")
        k.stamp()
        mask_init(k, 0, sKG)
        k(f"s_add_u32 s{sKG}, s{sKG}, 1")
        A.region(qk_slots(0, 0, True) + pv_slots(0, 0), exp_ops(1) + vd, qk_slots(1, 1, True), False)
        A.check(1, True)
        mask_init(k, 1, sKG)
        A.region(qk_slots(1, 1, True) + pv_slots(1, 1), exp_ops(0), last_first, True)
        A.check(0, True)
        if ps == 1:
            k(f"s_branch {llast}")
            k(f"{l1}:")
            A.region(sl1, exp_ops(0, 16), last_first, True)
            k(setl)
        k(f"{llast}:")
        k.stamp()
        A.region(pv_slots(0, 0), exp_ops(1, 16) + [(2 * i, l) for i, l in enumerate(d[5:])], pv_slots(1, 1), False)
        A.check(1, False)
        A.region(pv_slots(1, 1), [], None, False)
        if ps == 0:
            q_read(k, LQ_S)
        k.stamp()
        xreduce(k, "v_add_f32", [vL, vL + 1])
        k(f"""
        v_and_b32 v{vT3}, 0x18000, v{vLV}
        v_lshlrev_b32 v1, 4, v{vLANE}
        s_lshl_b32 s{sTA}, s{sG}, 2
        s_add_u32 s{sTA}, s{sTA}, s{sRr}
        s_lshl_b32 s{sTA}, s{sTA}, 10
        v_add_u32 v{vT2}, s{sTA}, v1
        v_add_u32 v{vT2}, v{vT2}, v{vT3}
        v_mov_b32 v{vT}, v{vNM}
        v_mov_b32 v{vT+1}, v{vL}
        v_mov_b32 v{vT+2}, v{vNM+4}
        v_mov_b32 v{vT+3}, v{vL+1}
        s_waitcnt lgkmcnt(0)
        s_barrier
        ds_write_b128 v{vT2}, {r4(vT)}
        v_xor_b32 v{vT2}, 0x1000, v{vT2}
        s_waitcnt lgkmcnt(0)
        s_barrier
        ds_read_b128 {r4(vT+4)}, v{vT2}
        s_waitcnt lgkmcnt(0)
        s_barrier
        """)
        for qt in range(2):
            m, l, pm, pl = vT + 2 * qt, vT + 2 * qt + 1, vT + 4 + 2 * qt, vT + 5 + 2 * qt
            k(f"""
            v_min_f32 v{vPS}, v{m}, v{pm}
            v_sub_f32 v{m}, v{vPS}, v{m}
            v_sub_f32 v{pm}, v{vPS}, v{pm}
            v_exp_f32 v{m}, v{m}
            v_exp_f32 v{pm}, v{pm}
            v_mul_f32 v{l}, v{l}, v{m}
            v_fma_f32 v{l}, v{pl}, v{pm}, v{l}
            v_rcp_f32 v{l}, v{l}
            v_mul_f32 v{vT0 + qt}, v{m}, v{l}
            """)
        k(f"""
        s_lshl_b32 s{sTA}, s{sRr}, 13
        v_add_u32 v1, s{sTA}, v1
        v_add_u32 v{vT3}, v{vT3}, v1
        v_add_u32 v1, 0x20000, v1
        """)
        lg1, lj = k.label("g1"), k.label("join")
        k(f"s_cmp_eq_u32 s{sG}, 1\ns_cbranch_scc1 {lg1}")
        for g in range(2):
            send = vO + 32 * (1 - g); keep = vO + 32 * g
            wa, ra = ("v1", f"v{vT3}") if g == 0 else (f"v{vT3}", "v1")
            for i in range(8):
                for r in range(4): k(f"v_mul_f32 v{send + 4*i + r}, v{send + 4*i + r}, v{vT0 + (i & 1)}")
                k(f"ds_write_b128 {wa}, {r4(send + 4*i)} offset:{1024*i}")
            k("s_waitcnt lgkmcnt(0)\ns_barrier")
            for i in range(8): k(f"ds_read_b128 {r4(vX + 4*i)}, {ra} offset:{1024*i}")
            for i in range(32): k(f"v_fma_f32 v{vX + i}, v{keep + i}, v{vT0 + ((i >> 2) & 1)}, v{vX + i}")
            if g == 0: k(f"s_branch {lj}\n{lg1}:")
        k(f"{lj}:")
        for qt in range(2):
            for sl in range(2):
                for hf in range(2):
                    a = vX + ((2 * sl + hf) * 2 + qt) * 4
                    dd = vP + (qt * 2 + sl) * 4 + 2 * hf
                    k(f"v_cvt_pk_bf16_f32 v{dd}, v{a}, v{a+1}\nv_cvt_pk_bf16_f32 v{dd+1}, v{a+2}, v{a+3}")
        k(f"""
        s_lshl_b32 s{sTA}, s{sQB}, 6
        s_add_u32 s{sTA}, s{sTA}, s{sH}
        s_lshl_b32 s{sTA}, s{sTA}, 12
        s_lshl_b32 s{sTB}, s{sG}, 11
        s_add_u32 s{sTA}, s{sTA}, s{sTB}
        s_add_u32 s{sTA}, s{sTA}, {WS_C}
        s_add_u32 s{sTB}, s{sTA}, 0x20000
        v_lshlrev_b32 v1, 4, v{vLANE}
        """)
        for qt in range(2):
            for sl in range(2):
                k(f"buffer_store_dwordx4 {r4(vP + (qt*2+sl)*4)}, v1, s[{sO}:{sO+3}], s{sTA if qt == 0 else sTB} offen offset:{1024*sl} {store_mods}")
        if after_store: after_store(ps)
        k.stamp()


def build_attn():
    k = Kernel("attn_kernel", vgpr=256)
    k.prof = os.environ.get("PROF") == "attn"
    A = Attn(k)
    end = k.label("end")
    k(f"s_cmp_ge_u32 s2, 256\ns_cbranch_scc1 {end}")
    load_ptrs(k, [(60, 56), (62, 72), (64, 120)])
    wg_decode(k)
    k.stamp()
    srd(k, sO, 64, WS_BYTES)
    srd(k, 12, 60, 2048 * 512 * 2)
    srd(k, 16, 62, 0x400000)
    attn_scalars(k)
    gemm_setup_lane(k, vLANE, sW, sH)
    sub = q_sub(k, 12, 16, 0)
    gemm_chain(k, [sub], after_last_barrier=first_dma)
    k.stamp()
    attn_body(k, A)
    k.stamp_dump(sO, sW, 128 << 20)
    k("s_endpgm")
    A.emit_rare()
    k(f"{end}:")
    k("s_endpgm")
    return k
```

```python
from gemm import *

def wg_decode(k, sW=20, sH=21, sP=22, vLANE=2):
    k(f"""
    v_lshrrev_b32 v1, 6, v0
    v_and_b32 v{vLANE}, 63, v0
    v_readfirstlane_b32 s{sW}, v1
    s_and_b32 s3, s2, 7
    s_lshr_b32 s4, s2, 3
    s_lshl_b32 s{sH}, s3, 2
    s_lshr_b32 s5, s4, 3
    s_add_u32 s{sH}, s{sH}, s5
    s_and_b32 s{sP}, s4, 7
    """)


def kv_subs(k, sC, sWk, sWv, sO, sW=20, sH=21, sP=22, vLANE=2, store_mods=""):
    k(f"s_lshl_b32 s46, s{sP}, 8\ns_lshl_b32 s47, s{sW}, 5\ns_add_u32 s46, s46, s47")
    gemm_setup_rows(k, 0, 46)
    k(f"""
    s_lshl_b32 s46, s{sH}, 19
    s_lshl_b32 s47, s{sP}, 16
    s_add_u32 s46, s46, s47
    s_lshr_b32 s47, s{sW}, 1
    s_lshl_b32 s47, s47, 14
    s_add_u32 s46, s46, s47
    v_lshlrev_b32 v{gOut}, 4, v{vLANE}
    v_add_u32 v{gOut}, s46, v{gOut}
    s_and_b32 s47, s{sW}, 1
    s_lshl_b32 s48, s47, 11
    s_add_u32 s49, s48, 8192
    s_lshl_b32 s50, s47, 12
    s_add_u32 s50, s50, {WS_V}
    s_add_u32 s51, s50, 8192
    """)

    def fin_k(k):
        pack_rowfrag(k, gPk)
        L = []
        for rt in range(4):
            for s in range(2):
                so = 48 if rt < 2 else 49
                off = (rt & 1) * 4096 + s * 1024
                if off >= 4096:
                    L.append(f"s_add_u32 s52, s{so}, 4096\nbuffer_store_dwordx4 {r4(gPk + (rt*2+s)*4)}, v{gOut}, s[{sO}:{sO+3}], s52 offen offset:{off - 4096} {store_mods}")
                else:
                    L.append(f"buffer_store_dwordx4 {r4(gPk + (rt*2+s)*4)}, v{gOut}, s[{sO}:{sO+3}], s{so} offen offset:{off} {store_mods}")
        return L

    def fin_v(k):
        pack_colfrag(k, gPk)
        L = []
        for u in range(2):
            for ct in range(4):
                L.append(f"buffer_store_dwordx4 {r4(gPk + (u*4+ct)*4)}, v{gOut}, s[{sO}:{sO+3}], s{50 + u} offen offset:{ct * 1024} {store_mods}")
        return L
    return [Sub(sC, sWk, 0, True, fin_k), Sub(sC, sWv, 0, False, fin_v)]


def build_kv():
    k = Kernel("kv_kernel", vgpr=256)
    k.prof = os.environ.get("PROF") == "kv"
    end = k.label("end")
    k(f"s_cmp_ge_u32 s2, 256\ns_cbranch_scc1 {end}")
    load_ptrs(k, [(26, 64), (30, 80), (32, 88), (34, 120)])
    wg_decode(k)
    k.stamp()
    srd(k, 8, 34, WS_BYTES)
    srd(k, 12, 26, 2048 * 512 * 2)
    srd(k, 16, 30, 0x400000)
    srd(k, 24, 32, 0x400000)
    gemm_setup_lane(k, 2, 20, 21)
    subs = kv_subs(k, 12, 16, 24, 8)
    rest = gemm_chain(k, subs)
    k.stamp()
    for l in rest: k(l)
    if k.prof:
        k("s_waitcnt vmcnt(0)"); k.stamp()
    k.stamp_dump(8, 20, 128 << 20)
    k(f"{end}:")
    k("s_endpgm")
    return k
```

```python
from common import *

LDS_BYTES = 65536
LOG2E = 1.4426950408889634


def outproj(k, sW, sTile, sWS, sWo, sOut, ldsbase=0, nbar="s_barrier"):
    vA, vD, vRd = 3, 4, 8
    vCt = 16
    NA = 5
    vWf = vCt + NA * 16
    vAcc = vWf + 32
    NR = 4
    k(f"""
    s_and_b32 s3, s{sTile}, 7
    s_lshr_b32 s4, s{sTile}, 3
    s_lshl_b32 s40, s3, 2
    s_lshr_b32 s5, s4, 3
    s_add_u32 s40, s40, s5
    s_and_b32 s41, s4, 7
    """)
    k(f"""
    s_lshl_b32 s42, s40, 19
    s_lshl_b32 s43, s{sW}, 15
    s_add_u32 s42, s42, s43
    s_add_u32 s42, s42, {WS_C}
    v_lshlrev_b32 v{vA}, 4, v2
    v_add_u32 v{vA}, s42, v{vA}
    """)
    k(f"""
    v_lshrrev_b32 v13, 3, v2
    v_lshlrev_b32 v13, 10, v13
    v_lshrrev_b32 v1, 4, v2
    v_lshlrev_b32 v14, 1, v1
    v_and_b32 v12, 7, v2
    v_xor_b32 v14, v14, v12
    v_lshlrev_b32 v14, 4, v14
    v_add_u32 v13, v13, v14
    s_lshl_b32 s42, s{sW}, 20
    s_lshl_b32 s43, s41, 7
    s_add_u32 s42, s42, s43
    v_add_u32 v{vD}, s42, v13
    s_lshl_b32 s44, s{sW}, 14
    s_add_u32 s44, s44, {ldsbase}
    """)
    for j in range(1, 4): k(f"v_add_u32 v{vD + j}, {j * 8192 - j * 1024}, v{vD}")
    k(f"""
    v_and_b32 v12, 15, v2
    v_lshrrev_b32 v13, 2, v12
    v_and_b32 v12, 3, v12
    v_lshlrev_b32 v12, 3, v12
    v_lshl_add_u32 v14, v1, 2, v13
    v_lshlrev_b32 v15, 7, v14
    v_add_u32 v12, v12, v15
    v_add_u32 v12, s44, v12
    v_lshrrev_b32 v14, 1, v14
    v_and_b32 v14, 3, v14
    """)
    for ct in range(4):
        k(f"v_xor_b32 v15, {ct}, v14\nv_lshlrev_b32 v15, 5, v15\nv_add_u32 v{vRd + ct}, v12, v15")

    def loads(i):
        L = []
        hd, s = i // 4, i % 4
        L.append(f"s_mov_b32 s45, {hd * 4096 + s * 1024}")
        for qt in range(4):
            if qt: L.append(f"s_add_u32 s45, s45, 0x20000")
            L.append(f"buffer_load_dwordx4 {r4(vCt + (i % NA) * 16 + qt * 4)}, v{vA}, s[{sWS}:{sWS+3}], s45 offen")
        L.append(f"s_add_u32 m0, s44, {(i % NR) * 4096}\ns_mov_b32 s46, {i * 32768}")
        for j in range(4):
            L.append(f"buffer_load_dwordx4 v{vD + j}, s[{sWo}:{sWo+3}], s46 offen offset:{1024 * j} lds")
        return L

    def trs(i):
        L = []
        for ct in range(4):
            for t in range(2):
                L.append(f"ds_read_b64_tr_b16 {r2(vWf + (i & 1) * 16 + ct * 4 + 2 * t)}, v{vRd + ct} offset:{(i % NR) * 4096 + t * 2048}")
        return L

    NSTEP = 32
    for i in range(NR):
        for l in loads(i): k(l)
    k(f"s_waitcnt vmcnt({8 * (NR - 1)})")
    for l in trs(0): k(l)
    for i in range(NSTEP):
        mf = []
        for ct in range(4):
            for qt in range(4):
                a = vAcc + (qt * 4 + ct) * 4
                mf.append(f"{MF} {r4(a)}, {r4(vWf + (i & 1) * 16 + ct * 4)}, {r4(vCt + (i % NA) * 16 + qt * 4)}, {'0' if i == 0 else r4(a)}")
        fl = []
        k("s_waitcnt lgkmcnt(0)")
        if i + NR < NSTEP:
            ld = loads(i + NR)
            for j, l in enumerate(ld): fl.append((j * 6 // len(ld), l))
        if i + 1 < NSTEP:
            young = 8 * (min(i + NR, NSTEP - 1) - (i + 1))
            fl.append((6, f"s_waitcnt vmcnt({young})"))
            for j, l in enumerate(trs(i + 1)): fl.append((6 + j, l))
        for l in interleave(mf, fl): k(l)
    k(f"""
    v_and_b32 v12, 15, v2
    v_lshlrev_b32 v13, 8, v12
    v_add_u32 v13, s44, v13
    v_xor_b32 v14, v1, v12
    """)
    for ct in range(4):
        k(f"v_xor_b32 v15, {4 * ct}, v14\nv_lshlrev_b32 v15, 4, v15\nv_add_u32 v{vRd + ct}, v13, v15")
    for qt in range(4):
        for ct in range(4):
            k(f"ds_write_b128 v{vRd + ct}, {r4(vAcc + (qt * 4 + ct) * 4)} offset:{qt * 4096}")
    k(f"s_waitcnt lgkmcnt(0)\n{nbar}")
    k(f"""
    s_lshl_b32 s45, s{sW}, 4
    v_lshrrev_b32 v12, 2, v2
    v_add_u32 v12, s45, v12
    v_and_b32 v13, 3, v2
    v_lshlrev_b32 v14, 2, v13
    v_and_b32 v15, 15, v12
    v_xor_b32 v14, v14, v15
    v_lshlrev_b32 v5, 8, v12
    v_add_u32 v5, {ldsbase}, v5
    """)
    for j in range(4):
        k(f"v_xor_b32 v15, {j}, v14\nv_lshlrev_b32 v15, 4, v15\nv_add_u32 v{vRd + j}, v5, v15")
    for w in range(4):
        for j in range(4):
            k(f"ds_read_b128 {r4(vCt + (w * 4 + j) * 4)}, v{vRd + j} offset:{w * 16384}")
    for w in range(1, 4):
        for i in range(16): k(f"v_add_f32 v{vCt + i}, v{vCt + i}, v{vCt + w * 16 + i}")
    for i in range(8): k(f"v_cvt_pk_bf16_f32 v{vCt + i}, v{vCt + 2*i}, v{vCt + 2*i + 1}")
    k(f"""
    s_lshl_b32 s45, s40, 17
    s_lshl_b32 s46, s41, 7
    s_add_u32 s45, s45, s46
    s_add_u32 s45, s45, 1024
    v_lshlrev_b32 v12, 11, v12
    v_lshlrev_b32 v13, 5, v13
    v_add_u32 v12, v12, v13
    buffer_store_dwordx4 {r4(vCt)}, v12, s[{sOut}:{sOut+3}], s45 offen
    buffer_store_dwordx4 {r4(vCt + 4)}, v12, s[{sOut}:{sOut+3}], s45 offen offset:16
    """)


L_U = 0
U_STRIDE = 4352
L_KH = 8704
L_KL = L_KH + 4608
L_PAR = L_KL + 4608
L_KT = L_PAR + 2048
L_Y = L_KT + 12288
S4D_LDS = L_Y + 32768
assert S4D_LDS <= 65536


def exp_bf16(k, d, x, t0, t1, t2):
    hi = struct.unpack("<f", struct.pack("<I", f32bits(LOG2E) & 0xffffff00))[0]
    lo = LOG2E - hi
    k(f"""
    v_mul_f32 v{t0}, {f32bits(hi)}, v{x}
    v_rndne_f32 v{t1}, v{t0}
    v_sub_f32 v{t0}, v{t0}, v{t1}
    v_mov_b32 v{t2}, {f32bits(lo)}
    v_fma_f32 v{t0}, v{x}, v{t2}, v{t0}
    v_exp_f32 v{t0}, v{t0}
    v_cvt_i32_f32 v{t1}, v{t1}
    v_ldexp_f32 v{t0}, v{t0}, v{t1}
    v_cvt_pk_bf16_f32 v{d}, v{t0}, v{t0}
    v_lshlrev_b32 v{d}, 16, v{d}
    """)


def s4d(k, sW, sCp, P, sOut, lb=0, nbar="s_barrier", tid="v0"):
    k(f"""
    s_and_b32 s3, s{sCp}, 7
    s_lshr_b32 s4, s{sCp}, 3
    s_lshl_b32 s40, s3, 6
    s_lshl_b32 s4, s4, 1
    s_add_u32 s40, s40, s4
    """)
    vU = 16
    k(f"s_lshl_b32 s41, s40, 1\nv_lshlrev_b32 v3, 13, {tid}\nv_add_u32 v3, s41, v3")
    for j in range(8):
        so = "0" if j < 4 else "s42"
        if j == 4: k("s_movk_i32 s42, 4096")
        k(f"buffer_load_dword v{vU + j}, v3, s[{P['u']}:{P['u']+3}], {so} offen offset:{1024 * (j % 4)}")
    k(f"s_lshl_b32 s41, s40, 8\nv_lshlrev_b32 v4, 1, {tid}\nv_add_u32 v4, s41, v4")
    for i, nm in enumerate(("logA", "Aim", "Cr", "Ci")):
        k(f"buffer_load_ushort v{24 + i}, v4, s[{P[nm]}:{P[nm]+3}], 0 offen")
    k(f"v_lshrrev_b32 v5, 7, {tid}\nv_add_u32 v5, s40, v5\nv_lshlrev_b32 v5, 1, v5")
    k(f"buffer_load_ushort v28, v5, s[{P['logdt']}:{P['logdt']+3}], 0 offen")
    k(f"s_lshl_b32 s41, s40, 1\nv_mov_b32 v5, s41\nbuffer_load_dword v29, v5, s[{P['D']}:{P['D']+3}], 0 offen")
    vR = 8
    k(f"""
    v_and_b32 v6, 15, v2
    v_lshrrev_b32 v7, 4, v2
    v_lshrrev_b32 v12, 3, v6
    v_lshlrev_b32 v12, 7, v12
    v_and_b32 v13, 7, v6
    v_add_u32 v12, v12, v13
    v_cvt_f32_u32 v{vR}, v12
    v_lshrrev_b32 v12, 2, v6
    v_lshlrev_b32 v12, 7, v12
    v_and_b32 v13, 3, v6
    v_lshl_add_u32 v12, v13, 1, v12
    v_add_u32 v12, 256, v12
    v_subrev_u32 v13, 8, v6
    v_lshrrev_b32 v14, 1, v13
    v_lshlrev_b32 v14, 7, v14
    v_and_b32 v13, 1, v13
    v_lshl_add_u32 v14, v13, 2, v14
    v_add_u32 v14, 512, v14
    v_cmp_gt_u32 vcc, 8, v6
    v_cndmask_b32 v12, v14, v12, vcc
    v_cvt_f32_u32 v{vR+1}, v12
    v_lshlrev_b32 v12, 7, v6
    v_add_u32 v12, 1024, v12
    v_cvt_f32_u32 v{vR+2}, v12
    v_lshlrev_b32 v12, 3, v6
    v_cvt_f32_u32 v{vR+3}, v12
    """)
    vE = 32
    for e in range(8):
        k(f"""
        v_lshlrev_b32 v12, 3, {tid}
        v_add_u32 v12, {e}, v12
        v_cvt_f32_u32 v12, v12
        v_cvt_pk_bf16_f32 v12, v12, v12
        v_lshlrev_b32 v12, 16, v12
        v_lshrrev_b32 v13, 23, v12
        v_subrev_u32 v13, 134, v13
        v_max_i32 v13, 0, v13
        v_min_i32 v13, 3, v13
        v_cvt_u32_f32 v12, v12
        v_lshrrev_b32 v14, 7, v12
        v_sub_u32 v15, 3, v13
        v_lshlrev_b32 v14, v15, v14
        v_and_b32 v15, 7, v12
        v_lshrrev_b32 v15, v13, v15
        v_add_u32 v14, v14, v15
        v_lshl_add_u32 v14, v13, 3, v14
        v_lshrrev_b32 v15, 3, v12
        v_and_b32 v15, 15, v15
        v_lshl_add_u32 v14, v14, 4, v15
        v_lshlrev_b32 v14, 2, v14
        v_add_u32 v{vE + e}, {lb + L_KT}, v14
        """)
    k(f"s_mov_b32 s41, 0x05040100\ns_mov_b32 s42, 0x07060302")
    for c in range(2):
        for j in range(4):
            k(f"v_perm_b32 v{40 + 4*c + j}, v{vU + 2*j + 1}, v{vU + 2*j}, s{41 + c}")
    k(f"""
    v_lshlrev_b32 v12, 4, {tid}
    v_add_u32 v12, {lb + L_U + 32}, v12
    ds_write_b128 v12, v[40:43]
    ds_write_b128 v12, v[44:47] offset:{U_STRIDE}
    v_mov_b32 v48, 0
    v_mov_b32 v49, 0
    v_mov_b32 v50, 0
    v_mov_b32 v51, 0
    v_lshlrev_b32 v12, 4, {tid}
    v_add_u32 v13, {lb + L_KH + 4096}, v12
    v_add_u32 v12, {lb + L_U}, v12
    v_cmp_gt_u32 vcc, 2, {tid}
    s_and_saveexec_b64 s[44:45], vcc
    ds_write_b128 v12, v[48:51]
    ds_write_b128 v12, v[48:51] offset:{U_STRIDE}
    s_mov_b64 exec, s[44:45]
    v_cmp_gt_u32 vcc, 32, {tid}
    s_and_saveexec_b64 s[44:45], vcc
    ds_write_b128 v13, v[48:51]
    ds_write_b128 v13, v[48:51] offset:4608
    s_mov_b64 exec, s[44:45]
    """)
    for r in range(24, 29): k(f"v_lshlrev_b32 v{r}, 16, v{r}")
    exp_bf16(k, 28, 28, 12, 13, 14)
    exp_bf16(k, 24, 24, 12, 13, 14)
    k(f"""
    v_mul_f32 v24, v24, v28
    v_mul_f32 v52, {f32bits(-LOG2E)}, v24
    v_mul_f32 v25, v25, v28
    v_mul_f32 v53, 0.15915494, v25
    v_mul_f32 v26, v26, v28
    v_add_f32 v54, v26, v26
    v_mul_f32 v27, v27, v28
    v_add_f32 v55, v27, v27
    v_and_b32 v12, 127, {tid}
    v_lshlrev_b32 v12, 4, v12
    v_add_u32 v30, {lb + L_PAR}, v12
    v_lshlrev_b32 v31, 16, v29
    v_and_b32 v29, 0xffff0000, v29
    """)
    vRes = 56
    vPar = 64
    vAh, vAl = 80, 92
    vBh, vBl = 104, 108
    vKa = 112
    vTm = 124
    for ch in range(2):
        k(f"v_lshrrev_b32 v12, 7, {tid}\nv_cmp_eq_u32 vcc, {ch}, v12\ns_and_saveexec_b64 s[44:45], vcc\nds_write_b128 v30, v[52:55]\ns_mov_b64 exec, s[44:45]")
        k(f"s_waitcnt lgkmcnt(0)\n{nbar}")
        k(f"s_lshl_b32 s41, s{sW}, 9\nv_lshlrev_b32 v12, 6, v7\nv_add_u32 v12, s41, v12\nv_add_u32 v12, {lb + L_PAR}, v12")
        for ks in range(2):
            for m in range(4): k(f"ds_read_b128 {r4(vPar + 4*m)}, v12 offset:{ks * 256 + m * 16}")
            for pi in range(4):
                for m in range(4):
                    al, be, cr, ci = (vPar + 4 * m + i for i in range(4))
                    t = vTm
                    k(f"""
                    v_mul_f32 v{t}, v{al}, v{vR + pi}
                    v_mul_f32 v{t+1}, v{be}, v{vR + pi}
                    v_exp_f32 v{t}, v{t}
                    v_fract_f32 v{t+1}, v{t+1}
                    v_cos_f32 v{t+2}, v{t+1}
                    v_sin_f32 v{t+3}, v{t+1}
                    v_mul_f32 v{t+2}, v{t+2}, v{t}
                    v_mul_f32 v{t+3}, v{t+3}, v{t}
                    """)
                    if pi == 3:
                        k(f"""
                        v_mul_f32 v{t}, v{cr}, v{t+2}
                        v_mul_f32 v{t+1}, v{cr}, v{t+3}
                        v_fma_f32 v{t}, -v{ci}, v{t+3}, v{t}
                        v_fma_f32 v{t+1}, v{ci}, v{t+2}, v{t+1}
                        v_mov_b32 v{t+2}, v{t}
                        v_sub_f32 v{t+3}, 0, v{t+1}
                        """)
                        dh, dl = vBh + m, vBl + m
                    else:
                        dh, dl = vAh + 4 * pi + m, vAl + 4 * pi + m
                    k(f"""
                    v_cvt_pk_bf16_f32 v{dh}, v{t+2}, v{t+3}
                    v_lshlrev_b32 v{t}, 16, v{dh}
                    v_and_b32 v{t+1}, 0xffff0000, v{dh}
                    v_sub_f32 v{t+2}, v{t+2}, v{t}
                    v_sub_f32 v{t+3}, v{t+3}, v{t+1}
                    v_cvt_pk_bf16_f32 v{dl}, v{t+2}, v{t+3}
                    """)
            for rt in range(3):
                a = vKa + 4 * rt
                k(f"{MF} {r4(a)}, {r4(vAl + 4*rt)}, {r4(vBh)}, {'0' if ks == 0 else r4(a)}")
                k(f"{MF} {r4(a)}, {r4(vAh + 4*rt)}, {r4(vBl)}, {r4(a)}")
                k(f"{MF} {r4(a)}, {r4(vAh + 4*rt)}, {r4(vBh)}, {r4(a)}")
        k(f"s_mul_i32 s41, s{sW}, 3072\nv_lshlrev_b32 v12, 8, v7\nv_lshl_add_u32 v12, v6, 2, v12\nv_add_u32 v12, s41, v12\nv_add_u32 v12, {lb + L_KT}, v12")
        for rt in range(3):
            for r in range(4): k(f"ds_write_b32 v12, v{vKa + 4*rt + r} offset:{rt * 1024 + r * 64}")
        k(f"s_waitcnt lgkmcnt(0)\n{nbar}")
        for e in range(8):
            for w in range(4): k(f"ds_read_b32 v{vPar + 4 * e + w}, v{vE + e} offset:{w * 3072}")
        for e in range(8):
            b = vPar + 4 * e
            k(f"v_add_f32 v{b}, v{b}, v{b+1}\nv_add_f32 v{b+2}, v{b+2}, v{b+3}\nv_add_f32 v{b}, v{b}, v{b+2}")
        for j in range(4):
            lo_e, hi_e = 7 - 2 * j, 6 - 2 * j
            x, y = vPar + 4 * lo_e, vPar + 4 * hi_e
            k(f"""
            v_cvt_pk_bf16_f32 v{vBh + j}, v{x}, v{y}
            v_lshlrev_b32 v{vTm}, 16, v{vBh + j}
            v_and_b32 v{vTm+1}, 0xffff0000, v{vBh + j}
            v_sub_f32 v{x}, v{x}, v{vTm}
            v_sub_f32 v{y}, v{y}, v{vTm+1}
            v_cvt_pk_bf16_f32 v{vBl + j}, v{x}, v{y}
            """)
        k(f"""
        v_sub_u32 v12, 255, {tid}
        v_lshlrev_b32 v12, 4, v12
        v_add_u32 v12, {lb + L_KH}, v12
        ds_write_b128 v12, {r4(vBh)}
        ds_write_b128 v12, {r4(vBl)} offset:4608
        s_waitcnt lgkmcnt(0)
        {nbar}
        """)
        vCA = 64
        vCB = 96
        vY = 128
        k(f"""
        v_lshlrev_b32 v12, 4, v7
        v_lshl_add_u32 v12, v6, 1, v12
        s_lshl_b32 s41, s{sW}, 7
        v_add_u32 v12, s41, v12
        v_add_u32 v12, {lb + L_U + ch * U_STRIDE + 2}, v12
        v_lshlrev_b32 v13, 5, v6
        v_lshlrev_b32 v14, 4, v7
        v_sub_u32 v13, v14, v13
        v_add_u32 v13, s41, v13
        v_add_u32 v13, {lb + L_KH + 254 * 16 - 56 * 64}, v13
        """)
        for rr in range(2):
            for m in range(8): k(f"ds_read_b128 {r4(vCA + 4*m)}, v12 offset:{rr * 64 + m * 512}")
            def rb(n):
                b = vCB + 8 * (n % 4)
                return [f"ds_read_b128 {r4(b)}, v13 offset:{rr * 64 + n * 512}", f"ds_read_b128 {r4(b + 4)}, v13 offset:{rr * 64 + n * 512 + 4608}"]
            for n in (7, 6, 5):
                for l in rb(n): k(l)
            for n in range(7, -1, -1):
                if n - 3 >= 0:
                    for l in rb(n - 3): k(l)
                b = vCB + 8 * (n % 4)
                dlt = 7 - n
                for part in (4, 0):
                    for m in range(8 - dlt):
                        c = m + dlt
                        first = (rr == 0 and n == 7 and part == 4)
                        k(f"{MF} {r4(vY + 4*c)}, {r4(vCA + 4*m)}, {r4(b + part)}, {'0' if first else r4(vY + 4*c)}")
        k(f"s_lshl_b32 s41, s{sW}, 13\nv_lshlrev_b32 v12, 6, v6\nv_lshl_add_u32 v12, v7, 4, v12\nv_add_u32 v12, s41, v12\nv_add_u32 v12, {lb + L_Y}, v12")
        for c in range(8): k(f"ds_write_b128 v12, {r4(vY + 4*c)} offset:{c * 1024}")
        k(f"s_waitcnt lgkmcnt(0)\n{nbar}")
        k(f"v_lshlrev_b32 v12, 5, {tid}\nv_add_u32 v12, {lb + L_Y}, v12")
        for w in range(4):
            for h in range(2): k(f"ds_read_b128 {r4(vCA + 8*w + 4*h)}, v12 offset:{w * 8192 + h * 16}")
        for w in range(1, 4):
            for i in range(8): k(f"v_add_f32 v{vCA + i}, v{vCA + i}, v{vCA + 8*w + i}")
        dsk = 31 if ch == 0 else 29
        for i in range(8):
            if ch == 0: k(f"v_lshlrev_b32 v12, 16, v{vU + i}")
            else: k(f"v_and_b32 v12, 0xffff0000, v{vU + i}")
            k(f"""
            v_mul_f32 v12, v12, v{dsk}
            v_cvt_pk_bf16_f32 v12, v12, v{vCA + i}
            v_lshlrev_b32 v13, 16, v12
            v_and_b32 v12, 0xffff0000, v12
            v_add_f32 v12, v12, v13
            """)
            if ch == 0: k(f"v_mov_b32 v{vRes + i}, v12")
            else: k(f"v_cvt_pk_bf16_f32 v{vRes + i}, v{vRes + i}, v12")
    k(f"s_lshl_b32 s41, s40, 1\nv_lshlrev_b32 v3, 14, {tid}\nv_add_u32 v3, s41, v3")
    for i in range(8):
        if i % 2 == 0: k(f"s_movk_i32 s42, {i * 2048}")
        k(f"buffer_store_dword v{vRes + i}, v3, s[{sOut}:{sOut+3}], s42 offen offset:{(i % 2) * 2048}")


def build_out():
    k = Kernel("out_kernel", vgpr=256)
    end, ls4 = k.label("end"), k.label("s4d")
    k(f"s_cmp_ge_u32 s2, 512\ns_cbranch_scc1 {end}")
    k("v_lshrrev_b32 v1, 6, v0\nv_and_b32 v2, 63, v0\nv_readfirstlane_b32 s20, v1")
    k(f"s_cmp_ge_u32 s2, 256\ns_cbranch_scc1 {ls4}")
    load_ptrs(k, [(60, 96), (62, 104), (64, 120)])
    srd(k, 8, 64, WS_BYTES)
    srd(k, 12, 60, 0x400000)
    srd(k, 16, 62, 2048 * 1024 * 2)
    outproj(k, 20, 2, 8, 12, 16)
    k("s_endpgm")
    k(f"{ls4}:")
    load_ptrs(k, [(60, 0), (62, 8), (64, 16), (66, 24), (68, 32), (70, 40), (72, 48), (74, 104)])
    P = dict(u=8, logA=12, Aim=16, Cr=24, Ci=28, logdt=32, D=36)
    srd(k, 8, 60, 2048 * 512 * 2)
    for nm, p in (("logA", 62), ("Aim", 64), ("Cr", 66), ("Ci", 68)): srd(k, P[nm], p, 512 * 128 * 2)
    srd(k, 32, 70, 1024); srd(k, 36, 72, 1024)
    srd(k, 48, 74, 2048 * 1024 * 2)
    k("s_sub_u32 s21, s2, 256")
    s4d(k, 20, 21, P, 48)
    k(f"{end}:")
    k("s_endpgm")
    return k
```

```python
import sys
from asmlib import *

HEADER = open("concat_heads__ssm_conv_s4d__compressed_kv_cla__prompt.s.ref").read().split("; Override launch")[0]

def build(path, which):
    ks = []
    launches = []
    if "kv" in which:
        import k_kv
        ks.append(k_kv.build_kv()); launches.append(("kv_kernel", 256, 512, 147456))
    if "attn" in which:
        import k_attn2
        ks.append(k_attn2.build_attn()); launches.append(("attn_kernel", 256, 512, 163840))
    if "out" in which:
        import k_out
        ks.append(k_out.build_out()); launches.append(("out_kernel", 512, 256, k_out.LDS_BYTES))
    s = HEADER
    for n, g, b, l in launches:
        s += f"; @launch kernel={n} grid=({g},1,1) block=({b},1,1) lds={l}\n"
    s += '.amdgcn_target "amdgcn-amd-amdhsa--gfx950"\n.text\n'
    for k in ks:
        s += k.finish()
        print(k.name, "lines", len(k.lines), "nops", k.nops, file=sys.stderr)
    s += '.section .rodata,"a"\n'
    for k in ks: s += k.descriptor()
    open(path, "w").write(s)

if __name__ == "__main__":
    which = sys.argv[2].split(",") if len(sys.argv) > 2 else ("kv", "attn", "out")
    build(sys.argv[1], which)
```
